```python
import torch

def _softmax(x, axis=-1):
    return torch.softmax(x, dim=axis)
def _gelu(x):
    return torch.nn.functional.gelu(x, approximate="tanh")
def _silu(x):
    return torch.nn.functional.silu(x)
def _sigmoid(x):
    return torch.sigmoid(x)
def _layernorm(x, axis=-1, eps=1e-5):
    m = x.mean(dim=axis, keepdim=True)
    v = x.var(dim=axis, keepdim=True, unbiased=False)
    return (x - m) / torch.sqrt(v + eps)
def _scatter_add(tgt, idx, src, axis=0):
    return tgt.clone().index_add_(axis, idx, src)
def _segment_sum(src, seg, n):
    out = torch.zeros((n,) + src.shape[1:], dtype=src.dtype)
    return out.index_add_(0, seg, src)
def _pad(x, pw):
    flat = tuple(v for pair in reversed(pw) for v in pair)
    return torch.nn.functional.pad(x, flat)

kernel_name = 'sequential_preLN__mha_block_cached__geglu_ffn__decode'

def setup_inputs():

    _w = (lambda a: (lambda t: t.to(torch.bfloat16) if t.is_floating_point() else t)(torch.as_tensor(a)))
    def _A_setup():
        B, Sq, D = 2, 1, 640
        H, Sk, Dh = 32, 8192, 128
        return {
            "x": _w((lambda *s: torch.randn(*s, dtype=torch.bfloat16) * 0.05)(B, Sq, D)),
            "k_cache": _w((lambda *s: torch.randn(*s, dtype=torch.bfloat16) * 3.2)(B, H, Sk, Dh)),
            "v_cache": _w((lambda *s: torch.randn(*s, dtype=torch.bfloat16) * 0.4)(B, H, Sk, Dh)),
            "wq": _w((lambda *s: torch.randn(*s, dtype=torch.bfloat16) * 3.2)(D, H * Dh) * (D ** -0.5)),
            "wo": _w((lambda *s: torch.randn(*s, dtype=torch.bfloat16) * 0.4)(H * Dh, D) * ((H * Dh) ** -0.5)),
        }
    _A_in = _A_setup()

    def _B_setup():
        B, S, D, F = 2, 1, 640, 1728
        return {
            "x": _w((lambda *s: torch.randn(*s, dtype=torch.bfloat16) * 0.05)(B, S, D)),
            "w_gate": _w((lambda *s: torch.randn(*s, dtype=torch.bfloat16) * 0.05)(D, F)),
            "w_up": _w((lambda *s: torch.randn(*s, dtype=torch.bfloat16) * 0.05)(D, F)),
            "w_down": _w((lambda *s: torch.randn(*s, dtype=torch.bfloat16) * 0.05)(F, D)),
        }
    _B_in = _B_setup()

    return {
        "A_x": _A_in["x"],
        "A_k_cache": _A_in["k_cache"],
        "A_v_cache": _A_in["v_cache"],
        "A_wq": _A_in["wq"],
        "A_wo": _A_in["wo"],
        "B_x": _B_in["x"],
        "B_w_gate": _B_in["w_gate"],
        "B_w_up": _B_in["w_up"],
        "B_w_down": _B_in["w_down"],
    }

def reference(A_x, A_k_cache, A_v_cache, A_wq, A_wo, B_x, B_w_gate, B_w_up, B_w_down):
    def _A_ref(x, k_cache, v_cache, wq, wo):
        B, Sq, D = x.shape
        H, Dh = 32, 128
        q = (lambda x, *d: x.permute(*d))((x @ wq).reshape(B, Sq, H, Dh), 0, 2, 1, 3)
        scores = torch.einsum("bhqd,bhkd->bhqk", q, k_cache) * (Dh ** -0.5)
        p = _softmax(scores, axis=-1)
        o = torch.einsum("bhqk,bhkd->bhqd", p, v_cache)
        return (lambda x, *d: x.permute(*d))(o, 0, 2, 1, 3).reshape(B, Sq, H * Dh) @ wo

    def _B_ref(x, w_gate, w_up, w_down):
        return (_gelu(x @ w_gate) * (x @ w_up)) @ w_down

    x = A_x
    h = x + _A_ref(_layernorm(x, axis=-1), A_k_cache, A_v_cache, A_wq, A_wo)
    h2 = h + _B_ref(_layernorm(h, axis=-1), B_w_gate, B_w_up, B_w_down)
    return h2
```

```python
import re

TRANS = ("v_exp_f32", "v_log_f32", "v_rcp_f32", "v_rsq_f32", "v_sqrt_f32", "v_sin_f32", "v_cos_f32")
REG = re.compile(r"(?<![\w.])(-?)(abs\()?([vs])(?:(\d+)|\[(\d+):(\d+)\])")

def regs_of(op):
    out = []
    op = op.strip()
    if op in ("vcc", "exec", "m0", "scc"):
        return [(op, 0)]
    for m in REG.finditer(op):
        k = m.group(3)
        if m.group(4) is not None: out.append((k, int(m.group(4))))
        else: out += [(k, i) for i in range(int(m.group(5)), int(m.group(6)) + 1)]
    return out

def split_ops(s):
    ops, depth, cur = [], 0, ""
    for ch in s:
        if ch == "[": depth += 1
        if ch == "]": depth -= 1
        if ch == "," and depth == 0: ops.append(cur); cur = ""
        else: cur += ch
    if cur.strip(): ops.append(cur)
    return [o.strip() for o in ops]

class Ins:
    def __init__(self, text):
        self.text = text
        t = text.split(";")[0].strip()
        self.label = t[:-1] if t.endswith(":") else None
        self.directive = t.startswith(".") or t == ""
        self.op = ""; self.dst = []; self.src = []; self.srcC = []; self.srcAB = []; self.data = []
        self.states = 0
        if self.label or self.directive: return
        parts = t.split(None, 1)
        op = self.op = parts[0]
        rest = parts[1] if len(parts) > 1 else ""
        ops = split_ops(rest)
        if ops:
            last = ops[-1].split()
            ops[-1] = last[0] if last else ""
        self.states = int(rest.strip()) + 1 if op == "s_nop" else 1
        self.valu = op.startswith("v_") and not op.startswith("v_mfma")
        self.mfma = op.startswith("v_mfma")
        self.vmem = op.startswith(("buffer_", "global_"))
        self.ds = op.startswith("ds_")
        self.dpp = "_dpp" in op
        self.perml = op.startswith("v_permlane")
        self.trans = op.replace("_e32", "") in TRANS
        self.dot = op.startswith("v_dot")
        self.branch = op.startswith(("s_cbranch", "s_branch"))
        self.target = ops[0] if self.branch else None
        R = [regs_of(o) for o in ops]
        flat = lambda L: [r for x in L for r in x]
        if self.mfma:
            self.dst = R[0]; self.srcAB = R[1] + R[2]; self.srcC = R[3]; self.src = self.srcAB + self.srcC
        elif self.valu:
            if self.perml: self.dst = R[0] + R[1]; self.src = R[0] + R[1]
            elif "_co_" in op: self.dst = R[0] + R[1]; self.src = flat(R[2:])
            else:
                self.dst = R[0]; self.src = flat(R[1:])
                if op.startswith(("v_fmac", "v_dot2c")) or self.dpp: self.src = self.src + R[0]
        elif self.vmem:
            if "load" in op:
                self.dst = R[0]; self.src = flat(R[1:])
            elif "atomic" in op and op.startswith("global") and "sc0" in t:
                self.dst = R[0]; self.src = flat(R[1:])
            else:
                self.src = flat(R)
                self.data = R[0] if op.startswith("buffer") else R[1]
                if "atomic" in op and "sc0" in t: self.dst = R[0]
        elif self.ds:
            if "read" in op or "permute" in op or "_rtn" in op: self.dst = R[0]; self.src = flat(R[1:])
            else: self.src = flat(R)
        else:
            self.dst = R[0] if R and not op.startswith(("s_cmp", "s_bitcmp")) else []
            self.src = flat(R[1:]) if self.dst else flat(R)

def need(prod, cons):
    n = 0
    pd, cs, cd = set(prod.dst), set(cons.src), set(cons.dst)
    if prod.valu:
        vw = {r for r in pd if r[0] == "v"}; sw = pd - vw
        if cons.valu or cons.mfma:
            if vw & cs:
                if cons.dpp or cons.perml or cons.mfma: n = max(n, 2)
                if prod.trans: n = max(n, 1)
                if cons.op.startswith(("v_readlane", "v_readfirstlane")): n = max(n, 1)
            if sw & cs: n = max(n, 4 if cons.op.startswith(("v_readlane", "v_writelane")) else 2)
        if prod.trans and (cons.vmem or cons.ds) and vw & cs: n = max(n, 1)
        if prod.dot and vw & (cs | cd):
            same_c = cons.op == prod.op and cons.dst == prod.dst and not (vw & set(cons.src[:-len(cons.dst)]))
            if not same_c: n = max(n, 3)
        if cons.vmem and sw & cs: n = max(n, 5)
    if prod.mfma:
        big = "32x32" in prod.op
        if cons.mfma:
            if pd & set(cons.srcAB): n = max(n, 12 if big else 8)
            if pd & set(cons.srcC) and cons.srcC != prod.dst: n = max(n, 10 if big else 6)
            if pd & cd and not (pd & set(cons.srcC)): n = max(n, 0)
        elif cons.valu or cons.vmem or cons.ds:
            if pd & (cs | cd): n = max(n, 12 if big else 8)
            if cons.valu and set(prod.srcC) & cd: n = max(n, 7 if big else 3)
    if prod.vmem and len(prod.data) >= 3 and set(prod.data) & cd: n = max(n, 2)
    if prod.op.startswith("s_") and ("m0", 0) in pd and cons.vmem and " lds" in cons.text: n = max(n, 1)
    return n

class Asm:
    def __init__(self): self.lines = []
    def __call__(self, s):
        for l in s.split("\n"):
            l = l.strip()
            if l: self.lines.append(l)
    def finish(self):
        ins = [Ins(l) for l in self.lines]
        out = []
        for c in ins:
            if not (c.label or c.directive):
                dist, req = 0, 0
                for p in reversed(out):
                    if p.label or p.directive: continue
                    if p.op in ("s_branch", "s_endpgm"): break
                    req = max(req, need(p, c) - dist)
                    dist += p.states
                    if dist > 20: break
                if req > 0: out.append(Ins(f"s_nop {req-1}"))
            out.append(c)
        labels = {c.label: i for i, c in enumerate(out) if c.label}
        for i, b in enumerate(out):
            if b.label or b.directive or not b.branch: continue
            hist = []
            d = 0
            for p in reversed(out[: i + 1]):
                if p.label or p.directive: continue
                if p is not b and p.op in ("s_branch", "s_endpgm"): break
                hist.append(p); d += p.states
                if d > 20: break
            fwd = 0
            for c in out[labels[b.target]:]:
                if c.label or c.directive: continue
                dist = fwd
                for p in hist:
                    if need(p, c) > dist:
                        raise RuntimeError(f"hazard across branch '{b.text}': '{p.text}' -> '{c.text}' needs {need(p, c)} has {dist}")
                    dist += p.states
                fwd += c.states
                if fwd > 20 or c.op in ("s_branch", "s_endpgm"): break
        txt = []
        for c in out:
            txt.append(c.text if (c.label or c.text.startswith((".", ";"))) else "    " + c.text)
        return "\n".join(txt) + "\n"
```

```python
import sys, math, struct
from asmlib import Asm

NAME = "sequential_preLN__mha_block_cached__geglu_ffn__decode_kernel"
def fbits(x): return "0x%08x" % struct.unpack("<I", struct.pack("<f", x))[0]

EPOCH, QP, PART, ML, Y, HH, ACT, STAMP = 0, 0x10000, 0x90000, 0xB0000, 0xB4000, 0xDC000, 0xDD000, 0x100000
WS_BYTES = 0x200000
LQ, LML, LO, LXN, LHN, LRED, LDS_BYTES = 0, 256, 512, 2560, 3328, 5888, 8192
LOG2E = 1.4426950408889634
SCALE = 128 ** -0.5
DPP = "row_mask:0xf bank_mask:0xf"
SPIN = 200000

def gen(D=6, P=32, stamps=False, wdepth=6, header=""):
    a = Asm()
    uid = [0]
    def lab(p):
        uid[0] += 1
        return f"L_{p}_{uid[0]}"
    def stamp(k):
        if stamps: a(f"s_memrealtime s[{64+2*k}:{65+2*k}]")
    def stamp_flush():
        if not stamps: return
        a("s_load_dwordx2 s[96:97], s[0:1], 88")
        a("s_waitcnt lgkmcnt(0)")
        a(f"s_lshl_b32 s98, s2, 3\ns_add_u32 s98, s98, s99\ns_lshl_b32 s98, s98, 6\ns_add_u32 s98, s98, {STAMP}")
        a("s_mov_b64 exec, 1\nv_mov_b32 v1, s98")
        for q in range(4):
            for r in range(4): a(f"v_mov_b32 v{4+r}, s{64+2*(4*q+r)}")
            a(f"global_store_dwordx4 v1, v[4:7], s[96:97] offset:{16*q}")

    a(f".amdgcn_target \"amdgcn-amd-amdhsa--gfx950\"\n.text\n.globl {NAME}\n.p2align 8\n.type {NAME},@function\n{NAME}:")
    a("s_cmp_ge_u32 s2, 256\ns_cbranch_scc1 L_end")
    if stamps:
        for k in range(16): a(f"s_mov_b32 s{64+2*k}, 0")
    stamp(0)
    a("s_load_dwordx16 s[16:31], s[0:1], 0\ns_load_dwordx8 s[32:39], s[0:1], 64")
    a("v_lshrrev_b32 v1, 6, v0\nv_and_b32 v0, 63, v0\nv_readfirstlane_b32 s3, v1")
    a("s_and_b32 s4, s2, 31\ns_lshr_b32 s5, s2, 5\ns_and_b32 s6, s5, 1\ns_lshr_b32 s7, s5, 1")
    if stamps: a("s_mov_b32 s99, s3")
    a("v_and_b32 v3, 15, v0\nv_lshrrev_b32 v4, 4, v0")
    a("s_cmp_ge_u32 s3, 4\ns_cbranch_scc1 L_helper")

    vK, vV = 1, 2
    MK, QR, S, O, BA, BB = 8, 12, 28, 32, 36, 40
    vm, vl, t0, t1, t2, t3, P0, P1, al = 44, 45, 46, 47, 48, 49, 50, 51, 52
    RING = 56
    a(f"v_lshrrev_b32 v5, 1, v3\nv_lshlrev_b32 v{vK}, 8, v5\nv_lshl_add_u32 v{vK}, v4, 4, v{vK}")
    a(f"v_and_b32 v6, 1, v3\nv_lshl_add_u32 v{vK}, v6, 6, v{vK}")
    a(f"v_lshlrev_b32 v{vV}, 4, v3\nv_lshl_add_u32 v{vV}, v4, 9, v{vV}")
    a("s_lshl_b32 s40, s6, 5\ns_add_u32 s40, s40, s4\ns_lshl_b32 s40, s40, 21")
    a("s_lshl_b32 s41, s7, 2\ns_add_u32 s41, s41, s3\ns_lshl_b32 s41, s41, 12\ns_mov_b32 s42, s41")
    a("s_mov_b32 s10, 0x200000\ns_mov_b32 s11, 0x20000\ns_mov_b32 s14, 0x200000\ns_mov_b32 s15, 0x20000")
    a("s_waitcnt lgkmcnt(0)")
    a("s_add_u32 s8, s18, s40\ns_addc_u32 s9, s19, 0\ns_and_b32 s9, s9, 0xffff")
    a("s_add_u32 s12, s20, s40\ns_addc_u32 s13, s21, 0\ns_and_b32 s13, s13, 0xffff")
    KO, VO = [0, 128, 2048, 2176], [0, 256, 2048, 2304]
    slot = lambda n: RING + 4 * (n if n < P else n % 16)
    def issue(n, wait=True):
        if wait: a(f"s_waitcnt vmcnt({D-1})")
        u, r = n & 7, slot(n)
        if u < 4: a(f"buffer_load_dwordx4 v[{r}:{r+3}], v{vK}, s[8:11], s41 offen offset:{KO[u]} nt")
        else: a(f"buffer_load_dwordx4 v[{r}:{r+3}], v{vV}, s[12:15], s42 offen offset:{VO[u-4]} nt")
        if u == 3: a("s_add_u32 s41, s41, 0x10000")
        if u == 7: a("s_add_u32 s42, s42, 0x10000")
    def softmax():
        a(f"v_add_f32_dpp v{t0}, v{S}, v{S+1} quad_perm:[0,0,2,2] {DPP}")
        a(f"v_add_f32_dpp v{t1}, v{S+2}, v{S+3} quad_perm:[0,0,2,2] {DPP}")
        a(f"v_cvt_pk_bf16_f32 v{t2}, v{t0}, v{t1}")
        a(f"v_lshlrev_b32 v{t0}, 16, v{t2}\nv_and_b32 v{t1}, s44, v{t2}")
        a(f"v_mul_f32 v{t0}, s45, v{t0}\nv_mul_f32 v{t1}, s45, v{t1}")
        a(f"v_cvt_pk_bf16_f32 v{t2}, v{t0}, v{t1}")
        a(f"v_lshlrev_b32 v{t0}, 16, v{t2}\nv_and_b32 v{t1}, s44, v{t2}")
        a(f"v_max3_f32 v{t2}, v{t0}, v{t1}, v{vm}")
        a(f"v_max_f32_dpp v{t2}, v{t2}, v{t2} quad_perm:[2,3,0,1] {DPP}")
        a(f"v_mov_b32 v{t3}, v{t2}\nv_permlane16_swap_b32 v{t2}, v{t3}\nv_max_f32 v{t2}, v{t2}, v{t3}")
        a(f"v_mov_b32 v{t3}, v{t2}\nv_permlane32_swap_b32 v{t2}, v{t3}\nv_max_f32 v{t2}, v{t2}, v{t3}")
        a(f"v_sub_f32 v{al}, v{vm}, v{t2}\nv_sub_f32 v{t0}, v{t0}, v{t2}\nv_sub_f32 v{t1}, v{t1}, v{t2}")
        a(f"v_mul_f32 v{al}, s46, v{al}\nv_mul_f32 v{t0}, s46, v{t0}\nv_mul_f32 v{t1}, s46, v{t1}")
        a(f"v_exp_f32 v{al}, v{al}\nv_exp_f32 v{t0}, v{t0}\nv_exp_f32 v{t1}, v{t1}")
        a(f"v_mov_b32 v{vm}, v{t2}")
        a(f"v_cvt_pk_bf16_f32 v{P0}, v{t0}, v{t0}\nv_cvt_pk_bf16_f32 v{P1}, v{t1}, v{t1}")
        a(f"v_add_f32 v{t0}, v{t0}, v{t1}\nv_fma_f32 v{vl}, v{vl}, v{al}, v{t0}")
        for r in range(4): a(f"v_mul_f32_dpp v{O+r}, v{al}, v{O+r} quad_perm:[1,1,3,3] {DPP}")
    def bbuild(u):
        B = BA if u % 2 == 0 else BB
        q = 1 if u < 2 else 3
        for r in range(4): a(f"v_and_b32_dpp v{B+r}, v{P0+(u&1)}, v{MK+r} quad_perm:[{q},{q},{q},{q}] {DPP}")
    def consume(k, last=False):
        u, r = k & 7, slot(k)
        if u < 4:
            a(f"v_mfma_f32_16x16x32_bf16 v[{S}:{S+3}], v[{r}:{r+3}], v[{QR+4*u}:{QR+4*u+3}], " + ("0" if u == 0 else f"v[{S}:{S+3}]"))
            if u == 3:
                softmax()
                bbuild(0)
        else:
            u -= 4
            B = BA if u % 2 == 0 else BB
            a(f"v_mfma_f32_16x16x32_bf16 v[{O}:{O+3}], v[{r}:{r+3}], v[{B}:{B+3}], v[{O}:{O+3}]")
            if u < 3: bbuild(u + 1)
    for n in range(D): issue(n, wait=False)
    a(f"s_mov_b32 s44, 0xffff0000\ns_mov_b32 s45, {fbits(SCALE)}\ns_mov_b32 s46, {fbits(LOG2E)}")
    a(f"v_mov_b32 v7, 0xffff\nv_lshlrev_b32 v{t0}, 4, v6\nv_lshlrev_b32 v7, v{t0}, v7")
    for r in range(4):
        a(f"v_cmp_eq_u32 vcc, {r}, v5\nv_cndmask_b32 v{MK+r}, 0, v7, vcc")
    a(f"v_mov_b32 v{vm}, 0xff800000\nv_mov_b32 v{vl}, 0")
    for r in range(4): a(f"v_mov_b32 v{O+r}, 0")
    a(f"v_lshlrev_b32 v{t0}, 6, v6\nv_lshl_add_u32 v{t0}, v4, 4, v{t0}")
    a(f"v_lshlrev_b32 v6, 3, v4\nv_add_u32 v6, v6, v3\nv_lshlrev_b32 v6, 4, v6")
    a(f"s_lshl_b32 s47, s3, 9\ns_add_u32 s47, s47, {LO}\nv_add_u32 v6, s47, v6")
    a(f"s_lshl_b32 s47, s3, 3\ns_add_u32 s47, s47, {LML}\nv_mov_b32 v7, s47")
    a(f"v_and_b32 v5, 2, v3\nv_cmp_eq_u32 vcc, 0, v5")
    for n in range(D, P): issue(n)
    stamp(1)
    a("s_barrier")
    stamp(2)
    a(f"ds_read_b128 v[{BA}:{BA+3}], v{t0} offset:{LQ}\nds_read_b128 v[{BB}:{BB+3}], v{t0} offset:{LQ+128}")
    a("s_waitcnt lgkmcnt(0)")
    for r in range(8):
        a(f"v_cndmask_b32 v{QR+r}, 0, v{BA+r}, vcc")
    a("s_not_b64 vcc, vcc")
    for r in range(8):
        a(f"v_cndmask_b32 v{QR+8+r}, 0, v{BA+r}, vcc")
    n, k = P, 0
    N2 = P + 16
    pattern = list("CCCCIIIICCCCII")
    while n < N2:
        tok = pattern.pop(0) if pattern else None
        if tok == "C": consume(k); k += 1
        elif tok == "I": issue(n); n += 1
        else:
            c = 0
            while c < 4 and k <= n - 1 - D: consume(k); k += 1; c += 1
            assert k > n - P
            issue(n); n += 1
    while k <= n - 1 - D: consume(k); k += 1
    assert k == n - D and k >= P, (k, n)
    iters = (256 - N2) // 16
    a(f"s_mov_b32 s43, {iters}")
    a("L_stream:")
    for q in range(16):
        issue(N2 + q); consume(N2 + q - D)
    a("s_sub_u32 s43, s43, 1\ns_cmp_lg_u32 s43, 0\ns_cbranch_scc1 L_stream")
    assert 5 <= D <= 15
    stamp(3)
    for k in range(256 - D, 256):
        a(f"s_waitcnt vmcnt({255-k})")
        consume(k)
        if k == 251:
            a(f"v_add_f32_dpp v{vl}, v{vl}, v{vl} quad_perm:[2,3,0,1] {DPP}")
            a(f"v_mov_b32 v{t3}, v{vl}\nv_permlane16_swap_b32 v{vl}, v{t3}\nv_add_f32 v{vl}, v{vl}, v{t3}")
            a(f"v_mov_b32 v{t3}, v{vl}\nv_permlane32_swap_b32 v{vl}, v{t3}\nv_add_f32 v{vl}, v{vl}, v{t3}")
            a(f"s_mov_b64 exec, 2\nds_write_b64 v7, v[{vm}:{vl}]\ns_mov_b64 exec, -1\ns_waitcnt lgkmcnt(0)\ns_barrier")
    a("s_mov_b32 exec_lo, 0x00ff00ff\ns_mov_b32 exec_hi, 0x00ff00ff")
    a(f"ds_write_b128 v6, v[{O}:{O+3}]\ns_waitcnt lgkmcnt(0)")
    stamp(4)
    a("s_barrier")
    stamp_flush()
    a("s_endpgm")

    a("L_helper:")
    a("s_sub_u32 s3, s3, 4")
    a(f"s_mov_b32 s42, {WS_BYTES}\ns_mov_b32 s43, 0x20000\ns_mov_b32 s46, 2560\ns_mov_b32 s47, 0x20000")
    a(f"s_mov_b32 s56, 0xffff0000\ns_mov_b32 s57, {fbits(LOG2E)}\ns_mov_b32 s58, 0x3f803f80\ns_mov_b32 s59, {fbits(1/640)}")
    a("s_mov_b32 s61, 0x05040100\ns_mov_b32 s62, 0x07060302\ns_mov_b32 s63, 0")
    a("s_sub_u32 s10, s2, 160\ns_and_b32 s11, s10, 7\ns_mul_i32 s11, s11, 12\ns_lshr_b32 s10, s10, 3\ns_add_u32 s10, s10, s11")
    a("s_sub_u32 s11, s10, 40\ns_cmp_lt_u32 s10, 94\ns_cselect_b32 s8, 2, 3\ns_cmp_lt_u32 s10, 40\ns_cselect_b32 s8, 1, s8\ns_cselect_b32 s9, s10, s11")
    a("s_cmp_lt_u32 s5, 5\ns_cselect_b32 s8, 0, s8\ns_cselect_b32 s9, s5, s9")
    a(f"s_lshl_b32 s10, s4, 3\ns_lshl_b32 s11, s6, 2\ns_add_u32 s11, s11, s7\ns_add_u32 s10, s10, s11\ns_lshl_b32 s10, s10, 9\ns_add_u32 s10, s10, {PART}")
    a("v_lshl_add_u32 v1, v0, 3, s10")
    a(f"s_lshl_b32 s10, s4, 7\ns_lshl_b32 s11, s11, 3\ns_add_u32 s10, s10, s11\ns_add_u32 s10, s10, {ML}\nv_mov_b32 v2, s10")
    a("s_waitcnt lgkmcnt(0)")
    a("s_mov_b32 s40, s38\ns_and_b32 s41, s39, 0xffff\ns_mov_b32 s44, s16\ns_and_b32 s45, s17, 0xffff")
    a("s_cmp_eq_u32 s3, 0\ns_cbranch_scc1 L_qpath\ns_cmp_eq_u32 s3, 1\ns_cbranch_scc0 L_b0")

    a("v_mov_b32 v8, -1\nv_mov_b32 v9, -1\nv_mov_b32 v10, -1\nv_mov_b32 v11, -1")
    a("buffer_store_dwordx2 v[8:9], v1, s[40:43], 0 offen sc1")
    a("s_mov_b64 exec, 1\nbuffer_store_dwordx2 v[8:9], v2, s[40:43], 0 offen sc1\ns_mov_b64 exec, -1")
    a("v_and_b32 v5, 7, v0\nv_lshrrev_b32 v6, 3, v0")
    a("s_cmp_eq_u32 s8, 0\ns_cbranch_scc0 L_clr_nw")
    a(f"s_lshl_b32 s10, s9, 15\ns_lshl_b32 s11, s4, 7\ns_add_u32 s10, s10, s11\ns_add_u32 s10, s10, {Y}")
    a("v_lshlrev_b32 v6, 12, v6\nv_lshl_add_u32 v6, v5, 4, v6")
    a("buffer_store_dwordx4 v[8:11], v6, s[40:43], s10 offen sc1\ns_branch L_clr_done")
    a("L_clr_nw:\ns_cmp_eq_u32 s8, 1\ns_cbranch_scc0 L_clr_nd")
    a(f"s_lshl_b32 s10, s9, 5\ns_add_u32 s10, s10, {HH}")
    a("v_and_b32 v6, 1, v6\nv_mul_u32_u24 v6, 1280, v6\nv_lshl_add_u32 v6, v5, 2, v6")
    a("s_mov_b64 exec, 0xffff\nbuffer_store_dword v8, v6, s[40:43], s10 offen sc1\ns_branch L_clr_done")
    a("L_clr_nd:\ns_cmp_eq_u32 s8, 2\ns_cbranch_scc0 L_clr_done")
    a(f"s_lshl_b32 s10, s9, 6\ns_add_u32 s10, s10, {ACT}")
    a("v_and_b32 v6, 1, v4\nv_mul_u32_u24 v6, 3456, v6\nv_lshl_add_u32 v6, v3, 2, v6")
    a("s_mov_b32 exec_hi, 0\nbuffer_store_dword v8, v6, s[40:43], s10 offen sc1")
    a("L_clr_done:\ns_mov_b64 exec, 1\nv_mov_b32 v5, 0\nv_mov_b32 v6, 1\ns_waitcnt vmcnt(0)")
    a("global_atomic_add v5, v6, s[36:37] sc1\ns_mov_b64 exec, -1\ns_branch L_b0")

    def ln_stats(vs, vq, mb, rs, tmp):
        a(f"v_mul_f32 v{mb}, s59, {vs}\nv_mul_f32 v{rs}, s59, {vq}")
        a(f"v_fma_f32 v{rs}, -v{mb}, v{mb}, v{rs}\nv_max_f32 v{rs}, 0, v{rs}")
        a(f"v_cvt_pk_bf16_f32 v{tmp}, v{mb}, v{rs}\nv_lshlrev_b32 v{mb}, 16, v{tmp}\nv_and_b32 v{rs}, s56, v{tmp}")
        a(f"v_add_f32 v{rs}, {fbits(1e-5)}, v{rs}\nv_cvt_pk_bf16_f32 v{rs}, v{rs}, v{rs}\nv_and_b32 v{rs}, s56, v{rs}")
        a(f"v_sqrt_f32 v{rs}, v{rs}\nv_cvt_pk_bf16_f32 v{rs}, v{rs}, v{rs}\nv_and_b32 v{rs}, s56, v{rs}\nv_rcp_f32 v{rs}, v{rs}")
    def ln_norm(x, mb, rs, lo, hi):
        a(f"v_lshlrev_b32 v{lo}, 16, v{x}\nv_and_b32 v{hi}, s56, v{x}")
        a(f"v_sub_f32 v{lo}, v{lo}, v{mb}\nv_sub_f32 v{hi}, v{hi}, v{mb}")
        a(f"v_cvt_pk_bf16_f32 v{hi}, v{lo}, v{hi}\nv_lshlrev_b32 v{lo}, 16, v{hi}\nv_and_b32 v{hi}, s56, v{hi}")
        a(f"v_mul_f32 v{lo}, v{rs}, v{lo}\nv_mul_f32 v{hi}, v{rs}, v{hi}")
    def swapadd(v, t, which, op="v_add_f32"):
        a(f"v_mov_b32 v{t}, v{v}\nv_permlane{which}_swap_b32 v{v}, v{t}\n{op} v{v}, v{v}, v{t}")
    def poll(loads, regs, tmp):
        top, done = lab("poll"), lab("got")
        a(f"s_mov_b32 s60, {SPIN}\n{top}:")
        loads()
        a("s_waitcnt vmcnt(0)")
        regs = list(regs)
        if len(regs) == 1: a(f"v_mov_b32 v{tmp}, v{regs[0]}")
        else:
            if len(regs) % 2 == 0: a(f"v_max_u32 v{tmp}, v{regs[0]}, v{regs[1]}"); rest = regs[2:]
            else: a(f"v_max3_u32 v{tmp}, v{regs[0]}, v{regs[1]}, v{regs[2]}"); rest = regs[3:]
            for q in range(0, len(rest), 2): a(f"v_max3_u32 v{tmp}, v{tmp}, v{rest[q]}, v{rest[q+1]}")
        a(f"v_cmp_eq_u32 vcc, -1, v{tmp}\ns_cbranch_vccz {done}\ns_sub_u32 s60, s60, 1\ns_cbranch_scc0 {top}\n{done}:")

    a("L_qpath:")
    WQ, XS, XV, XN, MQ, DQ, B0, B1 = 64, 24, 34, 36, 56, 60, 16, 20
    a("v_lshrrev_b32 v5, 3, v3\nv_and_b32 v6, 7, v3")
    a("v_mul_u32_u24 v7, 1280, v5\nv_lshl_add_u32 v8, v4, 3, v6")
    a("v_lshl_add_u32 v9, v8, 4, v7\nv_lshl_add_u32 v10, v8, 3, v7")
    a("v_mov_b32 v11, 0\nbuffer_load_dword v12, v11, s[40:43], 0 offen sc1")
    a(f"buffer_load_dwordx4 v[{XS}:{XS+3}], v9, s[44:47], 0 offen\nbuffer_load_dwordx4 v[{XS+4}:{XS+7}], v9, s[44:47], 0 offen offset:512")
    a(f"buffer_load_dwordx2 v[{XS+8}:{XS+9}], v10, s[44:47], 0 offen offset:1024")
    a("s_mul_i32 s10, s5, 160\nv_mad_u32_u24 v9, v4, 40, v7\nv_add_u32 v13, 8, v6\nv_min_u32 v13, 9, v13")
    a("v_lshl_add_u32 v10, v13, 2, v9\nv_lshl_add_u32 v9, v6, 2, v9")
    a(f"buffer_load_dword v{XV}, v9, s[44:47], s10 offen\nbuffer_load_dword v{XV+1}, v10, s[44:47], s10 offen")
    a(f"s_mov_b32 s48, s22\ns_and_b32 s49, s23, 0xffff\ns_mov_b32 s50, {640*8192}\ns_mov_b32 s51, 0x20000")
    a(f"s_mul_i32 s10, s5, {80*8192}\ns_lshl_b32 s11, s4, 8\ns_add_u32 s10, s10, s11")
    a(f"v_mul_u32_u24 v9, {20*8192}, v4\nv_lshl_add_u32 v9, v3, 4, v9")
    for t in range(20):
        a(f"buffer_load_dwordx4 v[{WQ+4*t}:{WQ+4*t+3}], v9, s[48:51], s10 offen nt")
        if t < 19: a("s_add_u32 s10, s10, 8192")
    a("v_and_b32 v9, 1, v6\nv_lshlrev_b32 v9, 4, v9\nv_mov_b32 v10, 0xffff\nv_lshlrev_b32 v10, v9, v10\nv_lshrrev_b32 v9, 1, v6")
    for r in range(4): a(f"v_cmp_eq_u32 vcc, {r}, v9\nv_cndmask_b32 v{MQ+r}, 0, v10, vcc")
    a(f"v_lshl_add_u32 v9, v4, 1, v5\nv_mul_u32_u24 v9, 80, v9\nv_lshl_add_u32 v10, v6, 3, v9\nv_lshl_add_u32 v13, v13, 3, v9")
    a("v_mov_b32 v14, 0\nv_mov_b32 v15, 0")
    a("s_waitcnt vmcnt(20)")
    stamp(1)
    a("v_readfirstlane_b32 s63, v12")
    for r in range(10):
        a(f"v_dot2c_f32_bf16 v14, s58, v{XS+r}\nv_dot2c_f32_bf16 v15, v{XS+r}, v{XS+r}")
    a("s_add_u32 s63, s63, 0x9e3779b9")
    for perm in ("quad_perm:[1,0,3,2]", "quad_perm:[2,3,0,1]", "row_half_mirror"):
        a(f"v_add_f32_dpp v14, v14, v14 {perm} {DPP}\nv_add_f32_dpp v15, v15, v15 {perm} {DPP}")
    for w in (16, 32):
        a(f"v_mov_b32 v16, v14\nv_mov_b32 v17, v15\nv_permlane{w}_swap_b32 v14, v16\nv_permlane{w}_swap_b32 v15, v17")
        a("v_add_f32 v14, v14, v16\nv_add_f32 v15, v15, v17")
    ln_stats("v14", "v15", 14, 15, 16)
    for q, ad in ((0, 10), (1, 13)):
        ln_norm(XV + q, 14, 15, 16, 17)
        a(f"v_cvt_pk_bf16_f32 v16, v16, v16\nv_cvt_pk_bf16_f32 v17, v17, v17\nds_write_b64 v{ad}, v[16:17] offset:{LXN}")
    a("s_waitcnt lgkmcnt(0)")
    for q in range(5): a(f"ds_read_b128 v[{XN+4*q}:{XN+4*q+3}], v9 offset:{LXN+16*q}")
    a("s_waitcnt lgkmcnt(0)")
    def qb(t):
        B = B0 if t % 2 == 0 else B1
        for r in range(4): a(f"v_and_b32 v{B+r}, v{XN+t}, v{MQ+r}")
    qb(0)
    for t in range(20):
        if t < 19: qb(t + 1)
        B = B0 if t % 2 == 0 else B1
        a(f"s_waitcnt vmcnt({19-t})")
        a(f"v_mfma_f32_16x16x32_bf16 v[{DQ}:{DQ+3}], v[{WQ+4*t}:{WQ+4*t+3}], v[{B}:{B+3}], " + ("0" if t == 0 else f"v[{DQ}:{DQ+3}]"))
    a(f"s_lshl_b32 s10, s4, 14\ns_add_u32 s10, s10, {QP}\ns_lshl_b32 s11, s5, 11\ns_add_u32 s11, s11, s10")
    a("v_lshlrev_b32 v9, 10, v5\nv_lshl_add_u32 v9, v8, 5, v9")
    a("v_mov_b32 v17, s63\nv_mov_b32 v19, s63\nv_mov_b32 v21, s63\nv_mov_b32 v23, s63")
    a(f"v_mov_b32 v16, v{DQ}\nv_mov_b32 v18, v{DQ+1}\nv_mov_b32 v20, v{DQ+2}\nv_mov_b32 v22, v{DQ+3}")
    a("buffer_store_dwordx4 v[16:19], v9, s[40:43], s11 offen sc1\nbuffer_store_dwordx4 v[20:23], v9, s[40:43], s11 offen offset:16 sc1")
    stamp(2)
    a("s_lshl_b32 s11, s6, 10\ns_add_u32 s10, s10, s11\nv_lshlrev_b32 v9, 4, v0")
    a("s_add_u32 s11, s10, 4096\ns_add_u32 s12, s10, 8192\ns_add_u32 s13, s10, 12288")
    a(f"s_mov_b32 s60, {SPIN}\nL_qpoll:")
    for k in range(8):
        a(f"buffer_load_dwordx4 v[{WQ+4*k}:{WQ+4*k+3}], v9, s[40:43], s{10+k//2} offen offset:{2048*(k%2)} sc1")
    a("s_waitcnt vmcnt(0)")
    a(f"v_min_u32 v14, v{WQ+1}, v{WQ+3}\nv_max_u32 v15, v{WQ+1}, v{WQ+3}")
    for k in range(1, 8):
        a(f"v_min3_u32 v14, v14, v{WQ+4*k+1}, v{WQ+4*k+3}\nv_max3_u32 v15, v15, v{WQ+4*k+1}, v{WQ+4*k+3}")
    a("v_xor_b32 v14, s63, v14\nv_xor_b32 v15, s63, v15\nv_or_b32 v14, v14, v15")
    a("v_cmp_ne_u32 vcc, 0, v14\ns_cbranch_vccz L_qgot\ns_sub_u32 s60, s60, 1\ns_cbranch_scc0 L_qpoll\nL_qgot:")
    stamp(3)
    for st in (4, 2, 1):
        for k in range(st):
            a(f"v_add_f32 v{WQ+4*k}, v{WQ+4*k}, v{WQ+4*(k+st)}\nv_add_f32 v{WQ+4*k+2}, v{WQ+4*k+2}, v{WQ+4*(k+st)+2}")
    a(f"v_cvt_pk_bf16_f32 v14, v{WQ}, v{WQ+2}")
    a("v_lshlrev_b32 v9, 6, v4\nv_and_b32 v10, 1, v0\nv_lshl_add_u32 v9, v10, 5, v9\nv_and_b32 v10, 14, v0\nv_add_u32 v9, v9, v10")
    a(f"ds_write_b16 v9, v14 offset:{LQ}\nds_write_b16_d16_hi v9, v14 offset:{LQ+16}\ns_waitcnt lgkmcnt(0)")
    a("L_b0:\ns_barrier")
    stamp(4)
    a("s_cmp_eq_u32 s8, 0\ns_cbranch_scc1 L_roleW\ns_cmp_eq_u32 s8, 1\ns_cbranch_scc1 L_roleD\ns_cmp_eq_u32 s8, 2\ns_cbranch_scc1 L_roleG")

    WT = 64
    def wloads(specs):
        for q, (pre, txt) in enumerate(specs):
            if pre: a(pre)
            if q >= wdepth: a(f"s_waitcnt vmcnt({wdepth-1})")
            a(txt)
        a("s_waitcnt vmcnt(0)")
    def transpose(nsteps):
        for t in range(nsteps):
            for p in range(4):
                e, o = WT + 8 * t + p, WT + 8 * t + 4 + p
                a(f"v_perm_b32 v16, v{o}, v{e}, s61\nv_perm_b32 v{o}, v{o}, v{e}, s62\nv_mov_b32 v{e}, v16")
    wreg = lambda t, jj: WT + 8 * t + 4 * (jj & 1) + (jj >> 1)
    def endstage():
        skip, top, w4, out = lab("nochk"), lab("chk"), lab("w4"), lab("e")
        a(f"s_cmp_eq_u32 s3, 1\ns_cbranch_scc0 {skip}\ns_mov_b32 s60, {SPIN}\nv_mov_b32 v16, 0\n{top}:")
        a("global_load_dword v17, v16, s[36:37] sc1\ns_waitcnt vmcnt(0)\nv_cmp_gt_u32 vcc, 0x100, v17")
        a(f"s_cbranch_vccz {skip}\ns_sleep 8\ns_sub_u32 s60, s60, 1\ns_cbranch_scc0 {top}\n{skip}:")
        stamp(5)
        a(f"s_cmp_eq_u32 s3, 0\ns_cbranch_scc1 {w4}\ns_barrier\ns_barrier\ns_branch {out}\n{w4}:")
        a(f"v_mov_b32 v16, 0\nv_lshlrev_b32 v17, 3, v0\ns_barrier")
        stamp(6)
        a(f"ds_read_b128 v[24:27], v16 offset:{LML}\nds_read_b128 v[28:31], v16 offset:{LML+16}\ns_waitcnt lgkmcnt(0)")
        a("v_max3_f32 v20, v24, v26, v28\nv_max_f32 v20, v20, v30")
        for q in range(4): a(f"v_sub_f32 v{24+2*q}, v{24+2*q}, v20")
        for q in range(4): a(f"v_mul_f32 v{24+2*q}, s57, v{24+2*q}")
        for q in range(4): a(f"v_exp_f32 v{24+2*q}, v{24+2*q}")
        a("v_mul_f32 v21, v24, v25\nv_fmac_f32 v21, v26, v27\nv_fmac_f32 v21, v28, v29\nv_fmac_f32 v21, v30, v31")
        a("s_mov_b64 exec, 1\nbuffer_store_dwordx2 v[20:21], v2, s[40:43], 0 offen sc1\ns_mov_b64 exec, -1")
        a("s_barrier")
        stamp(7)
        for q in range(4): a(f"ds_read_b64 v[{32+2*q}:{33+2*q}], v17 offset:{LO+512*q}")
        a("s_waitcnt lgkmcnt(3)\nv_mul_f32 v22, v24, v32\nv_mul_f32 v23, v24, v33")
        for q in range(1, 4):
            a(f"s_waitcnt lgkmcnt({3-q})\nv_fmac_f32 v22, v{24+2*q}, v{32+2*q}\nv_fmac_f32 v23, v{24+2*q}, v{33+2*q}")
        a(f"buffer_store_dwordx2 v[22:23], v1, s[40:43], 0 offen sc1\n{out}:")
        stamp(8)

    endstage()
    stamp_flush()
    a("s_endpgm")

    a("L_roleW:")
    a(f"s_mov_b32 s48, s24\ns_and_b32 s49, s25, 0xffff\ns_mov_b32 s50, {4096*1280}\ns_mov_b32 s51, 0x20000")
    a(f"s_mul_i32 s10, s4, {128*1280}\ns_lshl_b32 s11, s9, 8\ns_add_u32 s10, s10, s11\ns_lshl_b32 s11, s3, 6\ns_add_u32 s10, s10, s11")
    a("v_mul_u32_u24 v5, 2560, v4\nv_lshl_add_u32 v5, v3, 2, v5")
    specs = []
    for t in range(4):
        for r in range(4):
            for hi in range(2):
                jj = 4 * hi + r
                pre = f"s_add_u32 s10, s10, {8*1280}" if (hi == 0 and (t or r)) else ""
                specs.append((pre, f"buffer_load_dword v{wreg(t, jj)}, v5, s[48:51], s10 offen offset:{1280*hi} nt"))
    wloads(specs); transpose(4)
    a("v_and_b32 v6, 1, v3\nv_bfe_u32 v7, v3, 1, 2\nv_lshrrev_b32 v8, 3, v3")
    a("v_lshlrev_b32 v9, 11, v6\nv_lshl_add_u32 v9, v8, 10, v9\nv_lshl_add_u32 v9, v7, 7, v9\nv_lshl_add_u32 v9, v4, 5, v9")
    a("v_lshlrev_b32 v10, 5, v6")
    a(f"s_lshl_b32 s12, s4, 12\ns_add_u32 s12, s12, {PART}\ns_lshl_b32 s13, s4, 7\ns_add_u32 s14, s13, {ML}")
    a(f"s_lshl_b32 s15, s9, 15\ns_add_u32 s13, s13, s15\ns_lshl_b32 s15, s3, 13\ns_add_u32 s13, s13, s15\ns_add_u32 s13, s13, {Y}")
    a("v_and_b32 v11, 7, v3\nv_lshlrev_b32 v11, 4, v11\nv_lshl_add_u32 v11, v8, 12, v11")
    a("v_cmp_eq_u32 s[52:53], 1, v8")
    endstage()
    poll(lambda: a("buffer_load_dwordx4 v[24:27], v10, s[40:43], s14 offen sc1\nbuffer_load_dwordx4 v[28:31], v10, s[40:43], s14 offen offset:16 sc1"), range(24, 32), 16)
    stamp(9)
    a("v_max3_f32 v20, v24, v26, v28\nv_max_f32 v20, v20, v30")
    for q in range(4): a(f"v_sub_f32 v{24+2*q}, v{24+2*q}, v20")
    for q in range(4): a(f"v_mul_f32 v{24+2*q}, s57, v{24+2*q}")
    for q in range(4): a(f"v_exp_f32 v{24+2*q}, v{24+2*q}")
    a("v_mul_f32 v21, v24, v25\nv_fmac_f32 v21, v26, v27\nv_fmac_f32 v21, v28, v29\nv_fmac_f32 v21, v30, v31\nv_rcp_f32 v21, v21")
    a("v_cndmask_b32 v18, v24, v28, s[52:53]\nv_cndmask_b32 v19, v26, v30, s[52:53]\nv_mul_f32 v18, v18, v21\nv_mul_f32 v19, v19, v21")
    def ld():
        for q, off in enumerate((0, 16, 512, 528)):
            a(f"buffer_load_dwordx4 v[{24+4*q}:{27+4*q}], v9, s[40:43], s12 offen offset:{off} sc1")
    poll(ld, range(24, 40), 16)
    stamp(10)
    for q in range(8): a(f"v_mul_f32 v{24+q}, v18, v{24+q}")
    for q in range(8): a(f"v_fmac_f32 v{24+q}, v19, v{32+q}")
    for q in range(8): a(f"v_add_f32_dpp v{24+q}, v{24+q}, v{24+q} row_ror:8 {DPP}")
    for p in range(4): a(f"v_cvt_pk_bf16_f32 v{32+p}, v{24+2*p}, v{25+2*p}")
    for t in range(1, 4):
        for p in range(4): a(f"v_mov_b32_dpp v{32+4*t+p}, v{32+p} row_shl:{2*t} {DPP} bound_ctrl:1")
    for t in range(4):
        a(f"v_mfma_f32_16x16x32_bf16 v[24:27], v[{32+4*t}:{35+4*t}], v[{WT+8*t}:{WT+8*t+3}], " + ("0" if t == 0 else "v[24:27]"))
        a(f"v_mfma_f32_16x16x32_bf16 v[28:31], v[{32+4*t}:{35+4*t}], v[{WT+8*t+4}:{WT+8*t+7}], " + ("0" if t == 0 else "v[28:31]"))
    a("s_mov_b64 exec, 0xffff\nv_mov_b32 v26, v28\nv_mov_b32 v27, v29")
    a("buffer_store_dwordx4 v[24:27], v11, s[40:43], s13 offen sc1")
    stamp(11)
    stamp_flush()
    a("s_endpgm")

    a("L_roleG:")
    a(f"s_mov_b32 s48, s28\ns_and_b32 s49, s29, 0xffff\ns_mov_b32 s50, {640*3456}\ns_mov_b32 s51, 0x20000")
    a(f"s_mov_b32 s52, s30\ns_and_b32 s53, s31, 0xffff\ns_mov_b32 s54, {640*3456}\ns_mov_b32 s55, 0x20000")
    a(f"s_mul_i32 s10, s3, {160*3456}\ns_lshl_b32 s11, s9, 6\ns_add_u32 s10, s10, s11")
    a(f"v_mul_u32_u24 v5, {8*3456}, v4\nv_lshl_add_u32 v5, v3, 2, v5")
    specs = []
    for t in range(5):
        for jj in range(8):
            pre = ""
            if jj % 2 == 0 and (t or jj): pre = f"s_add_u32 s10, s10, {2*3456 if jj else 26*3456}"
            specs.append((pre, f"buffer_load_dword v{wreg(2*t, jj)}, v5, s[48:51], s10 offen offset:{3456*(jj&1)} nt"))
            specs.append(("", f"buffer_load_dword v{wreg(2*t+1, jj)}, v5, s[52:55], s10 offen offset:{3456*(jj&1)} nt"))
    wloads(specs); transpose(10)
    a(f"s_and_b32 s10, s3, 1\ns_mul_i32 s10, s10, 1280\nv_lshl_add_u32 v6, v0, 2, s10")
    a("s_cmp_ge_u32 s3, 2")
    for k in range(5): a(f"s_cselect_b32 s{11+k}, {256*((k+3)%5)}, {256*k}" if False else f"s_mov_b32 s10, {256*((k+3)%5)}\ns_cselect_b32 s{11+k}, s10, {256*k}" if 256*k <= 64 else f"s_mov_b32 s10, {256*((k+3)%5)}\ns_cselect_b32 s{11+k}, s10, {256*k}")
    a("v_add_u32 v7, s11, v6\nv_add_u32 v8, s12, v6\nv_add_u32 v9, s13, v6")
    a(f"v_add_u32 v6, {HH}, v6")
    a(f"v_and_b32 v10, 1, v3\nv_mul_u32_u24 v10, 1280, v10\nv_lshl_add_u32 v10, v4, 4, v10\ns_mul_i32 s10, s3, 320\nv_add_u32 v10, s10, v10")
    a(f"s_lshl_b32 s10, s3, 9\ns_add_u32 s10, s10, {LRED}\nv_lshl_add_u32 v11, v3, 4, s10")
    a(f"v_lshrrev_b32 v12, 5, v0\nv_mul_u32_u24 v12, 3456, v12\nv_and_b32 v13, 30, v0\nv_lshl_add_u32 v12, v13, 1, v12")
    a(f"s_lshl_b32 s10, s9, 6\ns_add_u32 s10, s10, {ACT}\nv_add_u32 v12, s10, v12\nv_lshlrev_b32 v13, 3, v0")
    endstage()
    def ld():
        for k in range(5): a(f"buffer_load_dword v{24+k}, v6, s[40:43], s{11+k} offen sc1")
    a("v_mov_b32 v14, 0\nv_mov_b32 v15, 0")
    poll(ld, range(24, 29), 16)
    stamp(9)
    for k in range(5): a(f"v_dot2c_f32_bf16 v14, s58, v{24+k}\nv_dot2c_f32_bf16 v15, v{24+k}, v{24+k}")
    for perm in ("quad_perm:[1,0,3,2]", "quad_perm:[2,3,0,1]", "row_half_mirror", "row_mirror"):
        a(f"v_add_f32_dpp v14, v14, v14 {perm} {DPP}\nv_add_f32_dpp v15, v15, v15 {perm} {DPP}")
    for w in (16, 32):
        a(f"v_mov_b32 v16, v14\nv_mov_b32 v17, v15\nv_permlane{w}_swap_b32 v14, v16\nv_permlane{w}_swap_b32 v15, v17")
        a("v_add_f32 v14, v14, v16\nv_add_f32 v15, v15, v17")
    ln_stats("v14", "v15", 14, 15, 16)
    for k in range(3):
        ln_norm(24 + k, 14, 15, 16, 17)
        a(f"v_cvt_pk_bf16_f32 v16, v16, v17\nds_write_b32 v{7+k}, v16 offset:{LHN}")
    a("s_waitcnt lgkmcnt(0)\ns_barrier")
    stamp(10)
    for t in range(5): a(f"ds_read_b128 v[{40+4*t}:{43+4*t}], v10 offset:{LHN+64*t}")
    for t in range(5):
        a(f"s_waitcnt lgkmcnt({4-t})")
        for m in range(4):
            w = WT + 16 * t + 4 * m
            a(f"v_mfma_f32_16x16x32_bf16 v[{24+4*m}:{27+4*m}], v[{40+4*t}:{43+4*t}], v[{w}:{w+3}], " + ("0" if t == 0 else f"v[{24+4*m}:{27+4*m}]"))
    a("s_mov_b64 exec, 0xffff")
    for b in range(2):
        a(f"ds_write2_b32 v11, v{24+b}, v{32+b} offset0:{64*b} offset1:{64*b+1}")
        a(f"ds_write2_b32 v11, v{28+b}, v{36+b} offset0:{64*b+2} offset1:{64*b+3}")
    a("s_mov_b64 exec, -1\ns_waitcnt lgkmcnt(0)\ns_barrier")
    stamp(11)
    a("s_cmp_eq_u32 s3, 0\ns_cbranch_scc0 L_gend")
    for q in range(4): a(f"ds_read_b64 v[{24+2*q}:{25+2*q}], v13 offset:{LRED+512*q}")
    k0 = -2 * LOG2E * math.sqrt(2 / math.pi)
    a(f"v_mov_b32 v18, {fbits(k0)}")
    a("s_waitcnt lgkmcnt(2)\nv_add_f32 v24, v24, v26\nv_add_f32 v25, v25, v27\ns_waitcnt lgkmcnt(0)\nv_add_f32 v28, v28, v30\nv_add_f32 v29, v29, v31")
    a("v_add_f32 v24, v24, v28\nv_add_f32 v25, v25, v29\nv_cvt_pk_bf16_f32 v16, v24, v25\nv_lshlrev_b32 v24, 16, v16\nv_and_b32 v25, s56, v16")
    a(f"v_mul_f32 v16, v24, v24\nv_fmamk_f32 v16, v16, {fbits(k0*0.044715)}, v18\nv_mul_f32 v16, v16, v24\nv_exp_f32 v16, v16")
    a("v_add_f32 v16, 1.0, v16\nv_rcp_f32 v16, v16\nv_mul_f32 v16, v16, v24\nv_cvt_pk_bf16_f32 v16, v16, v16\nv_and_b32 v16, s56, v16\nv_mul_f32 v16, v16, v25")
    a(f"v_mov_b32_dpp v17, v16 quad_perm:[1,1,3,3] {DPP}\nv_cvt_pk_bf16_f32 v16, v16, v17")
    a("s_mov_b32 exec_lo, 0x55555555\ns_mov_b32 exec_hi, 0x55555555\nbuffer_store_dword v16, v12, s[40:43], 0 offen sc1")
    stamp(12)
    a("L_gend:")
    stamp_flush()
    a("s_endpgm")

    a("L_roleD:")
    a(f"s_mov_b32 s48, s32\ns_and_b32 s49, s33, 0xffff\ns_mov_b32 s50, {1728*1280}\ns_mov_b32 s51, 0x20000")
    a("s_mov_b32 s52, s34\ns_and_b32 s53, s35, 0xffff\ns_mov_b32 s54, 2560\ns_mov_b32 s55, 0x20000")
    a(f"s_mul_i32 s10, s3, {448*1280}\ns_lshl_b32 s11, s9, 5\ns_add_u32 s10, s10, s11")
    a(f"v_lshrrev_b32 v5, 3, v3\nv_lshl_add_u32 v5, v5, 2, v4\nv_mul_u32_u24 v5, {8*1280}, v5\nv_and_b32 v6, 7, v3\nv_lshl_add_u32 v5, v6, 2, v5\nv_add_u32 v5, s10, v5")
    a("v_and_b32 v6, 3, v0\nv_bfe_u32 v7, v0, 4, 1\nv_lshl_add_u32 v6, v7, 2, v6\nv_bfe_u32 v7, v0, 2, 2\nv_lshrrev_b32 v8, 5, v0")
    a("v_mul_u32_u24 v9, 1280, v8\nv_lshl_add_u32 v9, v6, 2, v9\nv_add_u32 v9, s11, v9")
    a("buffer_load_dword v14, v9, s[44:47], 0 offen")
    specs = []
    for u in range(7):
        for jj in range(8):
            pre = ""
            if jj % 4 == 0 and (u or jj): pre = f"v_add_u32 v5, {4*1280 if jj else 60*1280}, v5"
            specs.append((pre, f"buffer_load_dword v{wreg(u, jj)}, v5, s[48:51], 0 offen offset:{1280*(jj&3)} nt"))
    wloads(specs); transpose(7)
    a("v_and_b32 v15, s56, v14\nv_lshlrev_b32 v14, 16, v14")
    a("v_lshl_add_u32 v10, v8, 2, v7\nv_lshlrev_b32 v10, 7, v10\nv_lshl_add_u32 v10, v6, 4, v10")
    a(f"s_lshl_b32 s12, s9, 12\ns_add_u32 s12, s12, {Y}\ns_mov_b32 s13, {HH}")
    a("v_and_b32 v11, 1, v3\nv_mul_u32_u24 v11, 3456, v11\nv_bfe_u32 v12, v3, 1, 1\nv_lshl_add_u32 v11, v12, 6, v11\nv_lshl_add_u32 v11, v4, 4, v11")
    a(f"s_mul_i32 s14, s3, 896\ns_add_u32 s14, s14, {ACT}\ns_cmp_eq_u32 s3, 3\ns_cselect_b32 s15, 0, 128\ns_add_u32 s15, s15, s14")
    a(f"s_lshl_b32 s10, s3, 9\ns_add_u32 s10, s10, {LRED}\nv_lshl_add_u32 v12, v3, 5, s10")
    a(f"v_lshlrev_b32 v13, 9, v7\nv_lshl_add_u32 v13, v6, 5, v13\nv_lshl_add_u32 v13, v8, 2, v13\nv_add_u32 v13, {LRED}, v13")
    endstage()
    a("s_cmp_eq_u32 s3, 0\ns_cbranch_scc0 L_dact")
    def ld():
        for u in range(4): a(f"buffer_load_dwordx4 v[{24+4*u}:{27+4*u}], v10, s[40:43], s12 offen offset:{1024*u} sc1")
    poll(ld, range(24, 40), 16)
    stamp(9)
    for r in range(4): a(f"v_add_f32 v{24+r}, v{24+r}, v{28+r}\nv_add_f32 v{32+r}, v{32+r}, v{36+r}")
    for r in range(4): a(f"v_add_f32 v{24+r}, v{24+r}, v{32+r}")
    a("v_permlane32_swap_b32 v24, v25\nv_permlane32_swap_b32 v26, v27\nv_add_f32 v24, v24, v25\nv_add_f32 v26, v26, v27")
    for rot in (8, 4): a(f"v_add_f32_dpp v24, v24, v24 row_ror:{rot} {DPP}\nv_add_f32_dpp v26, v26, v26 row_ror:{rot} {DPP}")
    a("v_cvt_pk_bf16_f32 v16, v24, v26\nv_lshlrev_b32 v24, 16, v16\nv_and_b32 v26, s56, v16\nv_add_f32 v14, v14, v24\nv_add_f32 v15, v15, v26")
    a("v_cvt_pk_bf16_f32 v16, v14, v15")
    a("s_mov_b32 exec_lo, 0x000f000f\ns_mov_b32 exec_hi, 0x000f000f\nbuffer_store_dword v16, v9, s[40:43], s13 offen sc1\ns_mov_b64 exec, -1")
    a("v_lshlrev_b32 v14, 16, v16\nv_and_b32 v15, s56, v16")
    stamp(10)
    a("L_dact:")
    def ld():
        for u in range(6): a(f"buffer_load_dwordx4 v[{32+4*u}:{35+4*u}], v11, s[40:43], s14 offen offset:{128*u} sc1")
        a("buffer_load_dwordx4 v[56:59], v11, s[40:43], s15 offen offset:640 sc1")
    poll(ld, range(32, 60), 16)
    stamp(11)
    for u in range(7):
        a(f"v_mfma_f32_16x16x32_bf16 v[24:27], v[{32+4*u}:{35+4*u}], v[{WT+8*u}:{WT+8*u+3}], " + ("0" if u == 0 else "v[24:27]"))
        a(f"v_mfma_f32_16x16x32_bf16 v[28:31], v[{32+4*u}:{35+4*u}], v[{WT+8*u+4}:{WT+8*u+7}], " + ("0" if u == 0 else "v[28:31]"))
    a("s_mov_b64 exec, 0xffff\nds_write_b128 v12, v[24:27]\nds_write_b128 v12, v[28:31] offset:16\ns_mov_b64 exec, -1\ns_waitcnt lgkmcnt(0)\ns_barrier")
    stamp(12)
    a("s_cmp_eq_u32 s3, 0\ns_cbranch_scc0 L_dend")
    a("ds_read2_b32 v[24:25], v13 offset0:0 offset1:4\nds_read2_b32 v[26:27], v13 offset0:66 offset1:70\ns_waitcnt lgkmcnt(0)")
    a("v_add_f32 v24, v24, v26\nv_add_f32 v25, v25, v27")
    for rot in (8, 4): a(f"v_add_f32_dpp v24, v24, v24 row_ror:{rot} {DPP}\nv_add_f32_dpp v25, v25, v25 row_ror:{rot} {DPP}")
    a("v_cvt_pk_bf16_f32 v16, v24, v25\nv_lshlrev_b32 v24, 16, v16\nv_and_b32 v25, s56, v16\nv_add_f32 v14, v14, v24\nv_add_f32 v15, v15, v25")
    a("v_cvt_pk_bf16_f32 v16, v14, v15")
    a("s_mov_b32 exec_lo, 0x000f000f\ns_mov_b32 exec_hi, 0x000f000f\nbuffer_store_dword v16, v9, s[52:55], 0 offen")
    stamp(13)
    a("s_cmp_eq_u32 s9, 0\ns_cbranch_scc0 L_dend")
    a("s_mov_b64 exec, 1\nv_mov_b32 v17, 0\nv_mov_b32 v18, s63\nbuffer_store_dword v18, v17, s[40:43], 0 offen sc1")
    a("L_dend:")
    stamp_flush()
    a("L_end:\ns_endpgm")
    nv = RING + 4 * P
    body = a.finish()
    kd = f""".section .rodata,"a"
.p2align 6
.amdhsa_kernel {NAME}
  .amdhsa_next_free_vgpr {nv}
  .amdhsa_next_free_sgpr {100 if stamps else 64}
  .amdhsa_accum_offset {nv}
  .amdhsa_group_segment_fixed_size 0
  .amdhsa_kernarg_size 96
  .amdhsa_user_sgpr_count 2
  .amdhsa_user_sgpr_kernarg_segment_ptr 1
  .amdhsa_system_sgpr_workgroup_id_x 1
  .amdhsa_float_denorm_mode_32 3
.end_amdhsa_kernel
"""
    return header + f"; @launch grid=(256,1,1) block=(512,1,1) lds={LDS_BYTES}\n" + body + kd

if __name__ == "__main__":
    import argparse
    ap = argparse.ArgumentParser()
    ap.add_argument("out"); ap.add_argument("--stamps", action="store_true")
    ap.add_argument("-D", type=int, default=6); ap.add_argument("-P", type=int, default=32); ap.add_argument("--wdepth", type=int, default=6)
    o = ap.parse_args()
    open(o.out, "w").write(gen(D=o.D, P=o.P, stamps=o.stamps, wdepth=o.wdepth))
```

```python
import re
def build(s, expr):
    t=s.replace("    s_load_dwordx16 s[16:31], s[0:1], 0","    s_memrealtime s[64:65]\n    s_load_dwordx16 s[16:31], s[0:1], 0",1)
    i=t.index("    s_getreg_b32 s10, hwreg(HW_REG_XCC_ID, 0, 4)")
    t=t[:i]+"""    s_lshl_b32 s66, s2, 2
    s_add_u32 s66, s66, 0x190000
    v_mov_b32 v20, s66
    v_mov_b32 v21, s64
    s_mov_b64 exec, 1
    buffer_store_dword v21, v20, s[40:43], 0 offen sc1
    s_mov_b64 exec, -1
"""+t[i:]
    i=t.rindex("    s_mov_b32 exec_lo, 0x000f000f")
    red=""
    for op,reg in (("min",40),("max",41)):
        red+=f"    v_{op}3_i32 v{reg}, v32, v33, v34\n    v_{op}_i32 v{reg}, v{reg}, v35\n"
        for p in ("quad_perm:[1,0,3,2]","quad_perm:[2,3,0,1]","row_half_mirror","row_mirror"):
            red+=f"    s_nop 1\n    v_{op}_i32_dpp v{reg}, v{reg}, v{reg} {p} row_mask:0xf bank_mask:0xf\n"
        red+="    s_nop 1\n"
        for q in range(4): red+=f"    v_readlane_b32 s{72+q}, v{reg}, {16*q}\n"
        red+=f"    s_nop 3\n    s_{op}_i32 s72, s72, s73\n    s_{op}_i32 s74, s74, s75\n    s_{op}_i32 s{70 if op=='min' else 71}, s72, s74\n"
    t=t[:i]+f"""    s_memrealtime s[76:77]
    v_lshlrev_b32 v30, 4, v0
    v_add_u32 v30, 0x190000, v30
    buffer_load_dwordx4 v[32:35], v30, s[40:43], 0 offen sc1
    s_waitcnt vmcnt(0) lgkmcnt(0)
    v_subrev_u32 v32, s64, v32
    v_subrev_u32 v33, s64, v33
    v_subrev_u32 v34, s64, v34
    v_subrev_u32 v35, s64, v35
{red}
    s_sub_u32 s76, s76, s64
{expr}
    s_add_u32 s64, s64, s78
L_fix:
    s_memrealtime s[66:67]
    s_waitcnt lgkmcnt(0)
    s_sub_u32 s68, s66, s64
    s_cmp_lt_i32 s68, 0
    s_cbranch_scc1 L_fix
"""+t[i:]
    return t.replace("next_free_sgpr 64","next_free_sgpr 80")
s=open("t_15c.s").read()
open("x_min.s","w").write(build(s,"    s_add_u32 s78, s70, 10000"))
open("x_max.s","w").write(build(s,"    s_add_u32 s78, s71, 10000"))
open("x_skew.s","w").write(build(s,"    s_sub_u32 s78, s71, s70\n    s_mul_i32 s78, s78, 10\n    s_add_u32 s78, s78, s70\n    s_add_u32 s78, s78, 10000"))
open("x_span.s","w").write(build(s,"    s_sub_u32 s78, s76, s70\n    s_mul_i32 s78, s78, 3\n    s_add_u32 s78, s78, s70"))
open("x_min300.s","w").write(build(s,"    s_add_u32 s78, s70, 30000"))
for d in (44, 47, 50, 60, 80):
    open(f"x_min{d}.s","w").write(build(s,f"    s_add_u32 s78, s70, {d*100}"))
```
